```python
import torch

def _softmax(x, axis=-1):
    return torch.softmax(x, dim=axis)
def _gelu(x):
    return torch.nn.functional.gelu(x, approximate="tanh")
def _silu(x):
    return torch.nn.functional.silu(x)
def _sigmoid(x):
    return torch.sigmoid(x)
def _layernorm(x, axis=-1, eps=1e-5):
    m = x.mean(dim=axis, keepdim=True)
    v = x.var(dim=axis, keepdim=True, unbiased=False)
    return (x - m) / torch.sqrt(v + eps)
def _scatter_add(tgt, idx, src, axis=0):
    return tgt.clone().index_add_(axis, idx, src)
def _segment_sum(src, seg, n):
    out = torch.zeros((n,) + src.shape[1:], dtype=src.dtype)
    return out.index_add_(0, seg, src)
def _pad(x, pw):
    flat = tuple(v for pair in reversed(pw) for v in pair)
    return torch.nn.functional.pad(x, flat)

kernel_name = 'interleave_layers__sliding_local_dilated__mixer_s_mlp__prompt'

def setup_inputs():

    _w = (lambda a: (lambda t: t.to(torch.bfloat16) if t.is_floating_point() else t)(torch.as_tensor(a)))
    def _A_setup():
        B, S, D = 1, 2048, 512
        return {
            "x": _w((lambda *s: torch.randn(*s, dtype=torch.bfloat16) * 0.05)(B, S, D)),
            "wqkv": _w((lambda *s: torch.randn(*s, dtype=torch.bfloat16) * 0.1)(D, 3 * D)),
            "wo": _w((lambda *s: torch.randn(*s, dtype=torch.bfloat16) * 0.1)(D, D)),
        }
    _A_in = _A_setup()

    def _B_setup():
        B, S, D, F = 1, 2048, 512, 1792
        return {
            "x":  _w((lambda *s: torch.randn(*s, dtype=torch.bfloat16) * 0.05)(B, S, D)),
            "w1": _w((lambda *s: torch.randn(*s, dtype=torch.bfloat16) * 3.2)(D, D) * (D ** -0.5)),
            "w2": _w((lambda *s: torch.randn(*s, dtype=torch.bfloat16) * 3.2)(D, D) * (D ** -0.5)),
            "w3": _w((lambda *s: torch.randn(*s, dtype=torch.bfloat16) * 3.2)(D, F) * (D ** -0.5)),
            "w4": _w((lambda *s: torch.randn(*s, dtype=torch.bfloat16) * 3.2)(F, D) * (F ** -0.5)),
        }
    _B_in = _B_setup()

    return {
        "A_x": _A_in["x"],
        "A_wqkv": _A_in["wqkv"],
        "A_wo": _A_in["wo"],
        "B_x": _B_in["x"],
        "B_w1": _B_in["w1"],
        "B_w2": _B_in["w2"],
        "B_w3": _B_in["w3"],
        "B_w4": _B_in["w4"],
    }

def reference(A_x, A_wqkv, A_wo, B_x, B_w1, B_w2, B_w3, B_w4):
    def _A_ref(x, wqkv, wo):
        B, S, D = x.shape
        H = 32; Dh = D // H
        W, dil = 8, 2
        qkv = (lambda x, *d: x.permute(*d))((x @ wqkv).reshape(B, S, 3, H, Dh), 2, 0, 3, 1, 4)
        q, k, v = qkv[0], qkv[1], qkv[2]
        scale = Dh ** -0.5
        pos = torch.arange(S)
        off = torch.arange(W) * dil
        idx = pos[:, None] - off[None, :]
        mask = idx >= 0
        idx_c = torch.where(mask, idx, 0).reshape(-1)
        kg = k[:, :, idx_c, :].reshape(B, H, S, W, Dh)
        vg = v[:, :, idx_c, :].reshape(B, H, S, W, Dh)
        logits = torch.einsum("bhsd,bhswd->bhsw", q, kg) * scale
        logits = torch.where(mask[None, None, :, :], logits, -1e9)
        attn = _softmax(logits, axis=-1)
        o = torch.einsum("bhsw,bhswd->bhsd", attn, vg)
        return (lambda x, *d: x.permute(*d))(o, 0, 2, 1, 3).reshape(B, S, D) @ wo

    def _B_ref(x, w1, w2, w3, w4):
        B, S, D = x.shape
        h = _gelu(_layernorm(x, axis=-1) @ w1)
        c = D // 4
        g0 = _pad(h[:, :, 0*c:1*c], ((0, 0), (1, 0), (0, 0)))[:, :S, :]
        g1 = _pad(h[:, :, 1*c:2*c], ((0, 0), (0, 1), (0, 0)))[:, 1:, :]
        g2 = _pad(h[:, :, 2*c:3*c], ((0, 0), (2, 0), (0, 0)))[:, :S, :]
        g3 = _pad(h[:, :, 3*c:   ], ((0, 0), (0, 2), (0, 0)))[:, 2:, :]
        hs = torch.concatenate([g0, g1, g2, g3], axis=-1) @ w2
        x1 = x + hs
        h2 = _gelu(_layernorm(x1, axis=-1) @ w3) @ w4
        return x1 + h2

    x = A_x
    x = x + _A_ref(_layernorm(x, axis=-1), A_wqkv, A_wo)
    x = x + _B_ref(_layernorm(x, axis=-1), B_w1, B_w2, B_w3, B_w4)
    x = x + _A_ref(_layernorm(x, axis=-1), A_wqkv, A_wo)
    x = x + _B_ref(_layernorm(x, axis=-1), B_w1, B_w2, B_w3, B_w4)
    return x
```

```python
import re

REG_RE = re.compile(r'(?<![\w.])([vas])(?:\[(\d+):(\d+)\]|(\d+))(?![\w])')
TRANS = ('v_exp_f32', 'v_log_f32', 'v_rcp_f32', 'v_rsq_f32', 'v_sqrt_f32', 'v_sin_f32', 'v_cos_f32')


def regs_of(tok):
    tok = tok.strip()
    out = set()
    if tok in ('vcc', 'vcc_lo', 'vcc_hi'):
        return {('s', 'vcc')}
    if tok == 'exec':
        return {('s', 'exec')}
    if tok == 'm0':
        return {('s', 'm0')}
    for m in REG_RE.finditer(tok):
        k = m.group(1)
        if m.group(4) is not None:
            out.add((k, int(m.group(4))))
        else:
            for i in range(int(m.group(2)), int(m.group(3)) + 1):
                out.add((k, i))
    return out


class Ins:
    __slots__ = ('text', 'mn', 'defs', 'uses', 'kind', 'blk', 'passes', 'srcc', 'srcab', 'states', 'wide_store')

    def __init__(self, text, blk=None):
        self.text = text
        self.blk = blk
        self.defs = set()
        self.uses = set()
        self.passes = 0
        self.srcc = set()
        self.srcab = set()
        self.states = 1
        self.wide_store = set()
        t = text.split(';')[0].strip()
        if t.endswith(':') or t.startswith('.') or not t:
            self.mn = ''
            self.kind = 'label'
            self.states = 0
            return
        parts = t.split(None, 1)
        mn = self.mn = parts[0]
        rest = parts[1] if len(parts) > 1 else ''
        ops = [o.strip() for o in rest.split(',')] if rest else []
        opsr = []
        for o in ops:
            opsr.append(o.split()[0] if o else o)
        if mn == 's_nop':
            self.kind = 'nop'
            self.states = int(opsr[0], 0) + 1
            return
        if mn.startswith('v_mfma'):
            self.kind = 'mfma'
            self.passes = 8 if '32x32' in mn else 4
            self.defs = regs_of(opsr[0])
            self.srcab = regs_of(opsr[1]) | regs_of(opsr[2])
            self.srcc = regs_of(opsr[3])
            self.uses = self.srcab | self.srcc
            return
        if mn.startswith('v_'):
            self.kind = 'valu'
            if mn.startswith('v_cmp'):
                self.defs = regs_of(opsr[0])
                for o in opsr[1:]:
                    self.uses |= regs_of(o)
            elif mn.startswith('v_permlane'):
                self.defs = regs_of(opsr[0]) | regs_of(opsr[1])
                self.uses = set(self.defs)
            else:
                self.defs = regs_of(opsr[0])
                for o in opsr[1:]:
                    self.uses |= regs_of(o)
                if mn.startswith(('v_fmac', 'v_dot2c', 'v_pk_fmac')) or '_dpp' in mn:
                    self.uses |= self.defs
                if mn.startswith('v_cndmask') and len(opsr) == 3:
                    self.uses.add(('s', 'vcc'))
            return
        if mn.startswith(('buffer_', 'global_')):
            self.kind = 'vmem'
            islds = ' lds' in (' ' + rest + ' ').replace(',', ' ') or 'load_lds' in mn
            if mn.startswith(('buffer_wbl2', 'buffer_inv')):
                return
            if 'load' in mn and not islds:
                self.defs = regs_of(opsr[0])
                for o in opsr[1:]:
                    self.uses |= regs_of(o)
            else:
                for o in opsr:
                    self.uses |= regs_of(o)
                if islds:
                    self.uses.add(('s', 'm0'))
                    self.kind = 'vmem_lds'
                if 'store_dwordx4' in mn or 'store_dwordx3' in mn:
                    self.wide_store = regs_of(opsr[0] if mn.startswith('buffer_') else opsr[1])
            return
        if mn.startswith('ds_'):
            self.kind = 'ds'
            if mn.startswith('ds_read'):
                self.defs = regs_of(opsr[0])
                for o in opsr[1:]:
                    self.uses |= regs_of(o)
            else:
                for o in opsr:
                    self.uses |= regs_of(o)
            return
        if mn.startswith('s_'):
            self.kind = 'salu'
            if mn.startswith(('s_cmp', 's_bitcmp', 's_cbranch', 's_branch', 's_waitcnt', 's_barrier', 's_endpgm',
                              's_setprio', 's_sleep', 's_setpc')):
                for o in opsr:
                    self.uses |= regs_of(o)
            else:
                self.defs = regs_of(opsr[0]) if opsr else set()
                for o in opsr[1:]:
                    self.uses |= regs_of(o)
            return
        raise ValueError('unknown instruction: ' + text)


def need_states(p, c):
    n = 0
    vdefs_p = {r for r in p.defs if r[0] in 'va'}
    sdefs_p = {r for r in p.defs if r[0] == 's'}
    if p.kind == 'valu':
        if c.kind == 'mfma' and vdefs_p & c.uses:
            n = max(n, 2)
        if c.kind == 'valu':
            if vdefs_p & c.uses:
                if p.mn.startswith(TRANS):
                    n = max(n, 1)
                if c.mn.startswith('v_permlane') or '_dpp' in c.mn:
                    n = max(n, 2)
                if c.mn.startswith(('v_readlane', 'v_readfirstlane')):
                    n = max(n, 1)
            if sdefs_p & c.uses:
                n = max(n, 4 if c.mn.startswith(('v_readlane', 'v_writelane')) else 2)
        if c.kind in ('vmem', 'vmem_lds') and sdefs_p & c.uses:
            n = max(n, 5)
        if c.kind == 'salu' and sdefs_p & c.uses and not c.mn.startswith('s_cbranch'):
            n = max(n, 1)
    if p.kind == 'mfma':
        big = 12 if p.passes == 8 else 8
        if c.kind == 'mfma':
            if p.defs & c.srcab:
                n = max(n, big)
            if p.defs & c.srcc:
                if not (p.defs == c.srcc and p.passes == c.passes):
                    n = max(n, big - 2)
            elif p.defs & c.defs:
                n = max(n, big - 2)
        elif c.kind in ('valu', 'vmem', 'vmem_lds', 'ds'):
            if p.defs & (c.uses | c.defs):
                n = max(n, big)
            if c.kind == 'valu' and p.srcc & c.defs:
                n = max(n, 7 if p.passes == 8 else 3)
    if p.kind == 'salu' and ('s', 'm0') in p.defs and c.kind == 'vmem_lds':
        n = max(n, 1)
    if p.wide_store and (p.wide_store & c.defs):
        n = max(n, 2 if c.kind in ('valu', 'mfma') else 1)
    return n


class Kern:
    def __init__(self):
        self.ins = []
        self.vm = []
        self.lg = []
        self.blk = None
        self.nblk = 0
        self.nlab = 0

    def e(self, text, tag=None):
        i = Ins(text, self.blk)
        self.ins.append(i)
        if i.kind in ('vmem', 'vmem_lds'):
            self.vm.append((tag, self.blk is not None))
        elif i.kind == 'ds':
            self.lg.append((tag, self.blk is not None))
        return i

    def lab(self, stem='L'):
        self.nlab += 1
        return f'{stem}_{self.nlab}'

    def label(self, name):
        self.e(name + ':')

    def begin_cond(self):
        assert self.blk is None
        self.nblk += 1
        self.blk = self.nblk

    def end_cond(self):
        self.blk = None

    def alt(self, setup_scc, fa, fb):
        la, lb = self.lab('ALT'), self.lab('ALTE')
        setup_scc()
        self.e(f's_cbranch_scc1 {la}')
        vm0 = list(self.vm)
        self.begin_cond()
        fa()
        self.e(f's_branch {lb}')
        self.end_cond()
        vma = self.vm
        self.vm = list(vm0)
        self.label(la)
        self.begin_cond()
        fb()
        self.end_cond()
        self.label(lb)
        assert [t for t, _ in vma] == [t for t, _ in self.vm], 'alt blocks differ'
        n0 = len(vm0)
        keep = {id(x) for x in vm0}
        self.vm = [x if id(x) in keep else (x[0], False) for x in self.vm]

    def _wait(self, q, tag, mx):
        idx = -1
        for i, (t, c) in enumerate(q):
            if t == tag or (isinstance(tag, (list, tuple, set)) and t in tag):
                idx = i
        if idx < 0:
            return None
        n = sum(1 for (t, c) in q[idx + 1:] if not c)
        n = min(n, mx)
        return idx, n

    def vmwait(self, tag):
        r = self._wait(self.vm, tag, 63)
        if r is None:
            return
        idx, n = r
        self.e(f's_waitcnt vmcnt({n})')
        if self.blk is None:
            self.vm = self.vm[idx + 1:]

    def lgwait(self, tag):
        r = self._wait(self.lg, tag, 15)
        if r is None:
            return
        idx, n = r
        self.e(f's_waitcnt lgkmcnt({n})')
        if self.blk is None:
            self.lg = self.lg[idx + 1:]

    def wait_both(self, vtag, ltag):
        rv = self._wait(self.vm, vtag, 63)
        rl = self._wait(self.lg, ltag, 15)
        if rv and rl:
            self.e(f's_waitcnt vmcnt({rv[1]}) lgkmcnt({rl[1]})')
            self.vm = self.vm[rv[0] + 1:]
            self.lg = self.lg[rl[0] + 1:]
        elif rv:
            self.vmwait(vtag)
        elif rl:
            self.lgwait(ltag)

    def vm0(self):
        self.e('s_waitcnt vmcnt(0)')
        if self.blk is None:
            self.vm = []

    def lg0(self):
        self.e('s_waitcnt lgkmcnt(0)')
        if self.blk is None:
            self.lg = []

    def finish(self):
        out = []
        nnop = 0
        for c in self.ins:
            if c.kind in ('label', 'nop'):
                out.append(c)
                continue
            need = 0
            dist = 0
            steps = 0
            for p in reversed(out):
                if p.kind != 'label':
                    n = need_states(p, c)
                    if n > dist:
                        need = max(need, n - dist)
                    if p.blk is None or p.blk == c.blk:
                        dist += p.states
                steps += 1
                if dist >= 12 or steps > 200:
                    break
            if need:
                out.append(Ins(f's_nop {need - 1}', c.blk))
                nnop += 1
            out.append(c)
        self.nnop = nnop
        return '\n'.join(i.text for i in out)


def interleave(k, primary, secondary, budget, start=0):
    si = 0
    credit = 0.0
    for i, p in enumerate(primary):
        p()
        if i >= start:
            credit += budget
            while si < len(secondary) and credit >= secondary[si][0] * 0.5:
                credit -= secondary[si][0]
                secondary[si][1]()
                si += 1
    while si < len(secondary):
        secondary[si][1]()
        si += 1


KD = '''
.section .rodata,"a"
.p2align 6
.amdhsa_kernel {name}
  .amdhsa_next_free_vgpr {vgpr}
  .amdhsa_next_free_sgpr 102
  .amdhsa_accum_offset {acc}
  .amdhsa_group_segment_fixed_size 0
  .amdhsa_kernarg_size 88
  .amdhsa_user_sgpr_count 2
  .amdhsa_user_sgpr_kernarg_segment_ptr 1
  .amdhsa_system_sgpr_workgroup_id_x 1
  .amdhsa_float_denorm_mode_32 3
.end_amdhsa_kernel
.text
'''
```

```python
KB = 1024
MB = 1 << 20
PWQ = 0
PW3 = 0x180000
PW4 = 0x380000
CS = 0x540000
CSQ = CS
CS1 = CS + 0x1800
CS3 = CS + 0x2000
FLG = 0x548000
EF = FLG + 0x1000
LBASE = 0x600000
LS = 20 * MB
XA, O, XB, H, X1, H2 = 0, 2 * MB, 4 * MB, 6 * MB, 8 * MB, 10 * MB
SA = 17 * MB
SB = SA + 128 * KB
S1 = SA + 256 * KB
EXPX = 17 * MB + 512 * KB
EXPH = 18 * MB + 512 * KB
PROF = 0x3000000
WSREC = 0x4000000
OOB = 0x80000000


def lb(l):
    return LBASE + l * LS


def kpi(g, e):
    return 4 * g + e if e < 4 else 16 + 4 * g + e - 4


def krho(g, e):
    return 16 * (g >> 1) + 8 * (e >> 2) + 4 * (g & 1) + (e & 3)
```

```python
import sys, struct
from asmgen import Kern, KD, interleave
from layout import *

NAME = 'interleave_layers__sliding_local_dilated__mixer_s_mlp__prompt'


def fbits(x):
    return '0x%08x' % struct.unpack('<I', struct.pack('<f', x))[0]


def vr(a, n=1):
    return f'v{a}' if n == 1 else f'v[{a}:{a + n - 1}]'


def ar(a, n=4):
    return f'a[{a}:{a + n - 1}]'


def pk(k, op, dst, *srcs, neg=None):
    ops, sel, selhi = [], [], []
    for s in srcs:
        if isinstance(s, tuple):
            r = s[1]
            if r % 2 == 0:
                ops.append(vr(r, 2)); sel.append(0); selhi.append(0)
            else:
                ops.append(vr(r - 1, 2)); sel.append(1); selhi.append(1)
        elif isinstance(s, str):
            ops.append(s); sel.append(0); selhi.append(1)
        else:
            assert s % 2 == 0
            ops.append(vr(s, 2)); sel.append(0); selhi.append(1)
    assert dst % 2 == 0
    t = f'v_pk_{op}_f32 {vr(dst, 2)}, ' + ', '.join(ops)
    if any(sel):
        t += ' op_sel:[' + ','.join(map(str, sel)) + ']'
    if not all(selhi):
        t += ' op_sel_hi:[' + ','.join(map(str, selhi)) + ']'
    if neg:
        t += ' neg_lo:[' + ','.join(map(str, neg)) + '] neg_hi:[' + ','.join(map(str, neg)) + ']'
    k.e(t)


def srd(k, d, lo, nrec):
    k.e(f's_mov_b32 s{d}, s{lo}')
    k.e(f's_mov_b32 s{d + 1}, s{lo + 1}')
    k.e(f's_mov_b32 s{d + 2}, {hex(nrec)}')
    k.e(f's_mov_b32 s{d + 3}, 0x20000')


S_WS = 's[4:7]'
sGRP, sJ, sW, sRTG = 32, 33, 34, 35


def role_decode(k):
    k.e('v_lshrrev_b32 v2, 6, v0')
    k.e('v_and_b32 v0, 63, v0')
    k.e(f'v_readfirstlane_b32 s{sW}, v2')
    k.e('s_and_b32 s40, s2, 7')
    k.e('s_lshr_b32 s41, s2, 3')
    k.e(f's_and_b32 s{sJ}, s41, 7')
    k.e('s_lshr_b32 s41, s41, 3')
    k.e('s_lshl_b32 s40, s40, 2')
    k.e(f's_add_u32 s{sGRP}, s40, s41')
    k.e(f's_lshl_b32 s{sRTG}, s{sGRP}, 2')
    k.e(f's_add_u32 s{sRTG}, s{sRTG}, s{sW}')
    k.e('v_lshlrev_b32 v1, 4, v0')


def tile_rowmajor_addr(k, dst, tm, tg, gshift_bytes):
    k.e(f'v_and_b32 v{tm}, 15, v0')
    k.e(f'v_lshrrev_b32 v{tg}, 4, v0')
    k.e(f's_lshl_b32 s40, s{sRTG}, 14')
    k.e(f's_lshl_b32 s41, s{sJ}, 7')
    k.e('s_add_u32 s40, s40, s41')
    k.e(f'v_lshlrev_b32 v{dst}, 10, v{tm}')
    k.e(f'v_add_u32 v{dst}, s40, v{dst}')
    k.e(f'v_lshl_add_u32 v{dst}, v{tg}, {gshift_bytes}, v{dst}')


def unpack_bf16(k, dst, src, n):
    for i in range(n):
        k.e(f'v_lshlrev_b32 v{dst + 2 * i}, 16, v{src + i}')
        k.e(f'v_and_b32 v{dst + 2 * i + 1}, 0xffff0000, v{src + i}')


def stat_partial(k, x, t):
    pk(k, 'add', t, x, x + 2)
    pk(k, 'mul', t + 2, x, x)
    for i in range(1, 8):
        if i > 1:
            pk(k, 'add', t, t, x + 2 * i)
        pk(k, 'fma', t + 2, x + 2 * i, x + 2 * i, t + 2)
    k.e(f'v_add_f32 v{t}, v{t}, v{t + 1}')
    k.e(f'v_add_f32 v{t + 2}, v{t + 2}, v{t + 3}')
    k.e(f'v_permlane32_swap_b32 v{t}, v{t + 2}')
    k.e(f'v_add_f32 v{t}, v{t}, v{t + 2}')
    k.e(f'v_mov_b32 v{t + 1}, v{t}')
    k.e(f'v_permlane16_swap_b32 v{t}, v{t + 1}')
    k.e(f'v_add_f32 v{t}, v{t}, v{t + 1}')


def stat_store_addr(k, dst, t0, t1):
    k.e(f'v_and_b32 v{t0}, 15, v0')
    k.e(f'v_lshrrev_b32 v{t1}, 5, v0')
    k.e(f'v_lshlrev_b32 v{dst}, 4, v{t0}')
    k.e(f'v_lshl_add_u32 v{dst}, v{t1}, 2, v{dst}')
    k.e(f's_lshr_b32 s40, s{sJ}, 1')
    k.e('s_lshl_b32 s40, s40, 8')
    k.e(f's_and_b32 s41, s{sJ}, 1')
    k.e('s_lshl_b32 s41, s41, 3')
    k.e('s_add_u32 s40, s40, s41')
    k.e(f'v_add_u32 v{dst}, s40, v{dst}')


def stat_combine(k, s, mu, var):
    k.e(f'v_add_f32 v{s}, v{s}, v{s + 2}')
    k.e(f'v_add_f32 v{s + 1}, v{s + 1}, v{s + 3}')
    k.e(f'v_permlane32_swap_b32 v{s}, v{s + 1}')
    k.e(f'v_add_f32 v{s}, v{s}, v{s + 1}')
    k.e(f'v_mov_b32 v{s + 1}, v{s}')
    k.e(f'v_permlane16_swap_b32 v{s}, v{s + 1}')
    k.e(f'v_add_f32 v{s}, v{s}, v{s + 1}')
    k.e(f'v_mov_b32 v{s + 1}, v{s}')
    k.e(f'v_permlane32_swap_b32 v{s}, v{s + 1}')
    k.e(f'v_mul_f32 v{mu}, {fbits(1 / 512)}, v{s}')
    k.e(f'v_mul_f32 v{s + 1}, {fbits(1 / 512)}, v{s + 1}')
    k.e(f'v_fma_f32 v{var}, -v{mu}, v{mu}, v{s + 1}')
    k.e(f'v_max_f32 v{var}, 0, v{var}')


def gen_k0():
    k = Kern()
    e = k.e
    e('s_cmp_ge_u32 s2, 256')
    e('s_cbranch_scc1 K0_END')
    e('s_load_dwordx4 s[44:47], s[0:1], 0')
    e('s_load_dwordx2 s[48:49], s[0:1], 32')
    e('s_load_dwordx4 s[52:55], s[0:1], 48')
    e('s_load_dwordx2 s[56:57], s[0:1], 80')
    role_decode(k)
    e('s_waitcnt lgkmcnt(0)')
    srd(k, 4, 56, WSREC)
    srd(k, 8, 44, 2 * MB)
    tile_rowmajor_addr(k, 10, 11, 12, 3)
    for ct in range(4):
        e(f'buffer_load_dwordx2 v[{16 + 2 * ct}:{17 + 2 * ct}], v10, s[8:11], 0 offen offset:{32 * ct}', 'x')
    stat_store_addr(k, 13, 11, 12)
    e('s_cmp_lt_u32 s2, 12')
    e('s_cbranch_scc0 K0_NOFLAG')
    k.begin_cond()
    for i in range(4):
        e(f'v_mov_b32 v{48 + i}, 0')
    e('s_lshl_b32 s40, s2, 10')
    e(f's_add_u32 s40, s40, {hex(FLG)}')
    e(f'buffer_store_dwordx4 v[48:51], v1, {S_WS}, s40 offen')
    k.end_cond()
    k.label('K0_NOFLAG')
    k.vm0()
    e(f's_lshl_b32 s40, s{sRTG}, 14')
    e(f's_lshl_b32 s41, s{sJ}, 11')
    e('s_add_u32 s40, s40, s41')
    e(f's_add_u32 s40, s40, {hex(lb(0) + XA)}')
    e(f'buffer_store_dwordx4 v[16:19], v1, {S_WS}, s40 offen')
    e(f'buffer_store_dwordx4 v[20:23], v1, {S_WS}, s40 offen offset:1024')
    unpack_bf16(k, 24, 16, 8)
    stat_partial(k, 24, 40)
    e(f's_lshl_b32 s40, s{sRTG}, 10')
    e(f's_add_u32 s40, s40, {hex(lb(0) + SA)}')
    e(f'buffer_store_dword v40, v13, {S_WS}, s40 offen')
    e('v_and_b32 v11, 15, v0')
    e('v_lshrrev_b32 v12, 4, v0')
    e('v_lshrrev_b32 v14, 2, v11')
    e('v_and_b32 v15, 3, v0')
    e('v_lshrrev_b32 v16, 2, v0')
    e(f's_lshl_b32 s58, s{sW}, 13')
    e('v_mov_b32 v17, 0x3f803f80')
    e('s_cmp_lt_u32 s2, 48')
    e('s_cbranch_scc1 K0_TQ')
    e('s_cmp_lt_u32 s2, 104')
    e('s_cbranch_scc1 K0_T3')
    e('s_cmp_lt_u32 s2, 120')
    e('s_cbranch_scc1 K0_T1')
    e('s_cmp_lt_u32 s2, 232')
    e('s_cbranch_scc1 K0_T4')
    e('s_endpgm')

    def stage(ptr, nrec, stride, nrows_wave):
        srd(k, 12, ptr, nrec)
        e(f's_mov_b32 s40, {stride}')
        e('v_mul_lo_u32 v18, v16, s40')
        e('v_lshl_add_u32 v18, v15, 4, v18')
        e(f's_mul_i32 s41, s{sW}, {nrows_wave}')
        e('s_add_u32 s41, s41, s60')
        e(f's_mul_i32 s41, s41, {stride}')
        e('s_add_u32 s41, s41, s61')
        e('s_mov_b32 m0, s58')
        for n in range(nrows_wave // 16):
            e('buffer_load_dwordx4 v18, s[12:15], s41 offen lds', 'st')
            e(f's_add_u32 s41, s41, {16 * stride}')
            e('s_add_u32 m0, m0, 1024')
        k.vm0()

    def traddr(kind):
        if kind == 'pi':
            e('v_lshl_add_u32 v19, v12, 2, v14')
        elif kind == 'rho':
            e('v_lshrrev_b32 v20, 1, v12')
            e('v_and_b32 v21, 1, v12')
            e('v_lshlrev_b32 v20, 4, v20')
            e('v_lshl_add_u32 v20, v21, 2, v20')
            e('v_add_u32 v19, v20, v14')
        else:
            e('v_lshrrev_b32 v20, 1, v12')
            e('v_lshl_add_u32 v19, v20, 2, v14')
        e('v_lshlrev_b32 v19, 6, v19')
        e('v_lshl_add_u32 v19, v15, 3, v19')
        if kind == 'w3':
            e('v_and_b32 v21, 1, v12')
            e('v_lshl_add_u32 v19, v21, 5, v19')
        e('v_add_u32 v19, s58, v19')

    def frag(dst, off, halfoff):
        e(f'ds_read_b64_tr_b16 v[{dst}:{dst + 1}], v19 offset:{off}', 'f')
        e(f'ds_read_b64_tr_b16 v[{dst + 2}:{dst + 3}], v19 offset:{off + halfoff}', 'f')

    def dots(acc, src):
        for i in range(4):
            e(f'v_dot2_f32_bf16 v{acc}, v{src + i}, v17, v{acc}')

    def colsum_finish(accs, nsub, csbase):
        e(f's_mul_i32 s40, s{sW}, {nsub * 128}')
        e('s_add_u32 s40, s40, 0x8000')
        e('v_lshlrev_b32 v24, 7, v23')
        e('v_lshl_add_u32 v24, v22, 2, v24')
        e('v_add_u32 v24, s40, v24')
        for reg, co in accs:
            e(f'ds_write_b32 v24, v{reg} offset:{co * 4}')
        k.lg0()
        e('s_barrier')
        e('v_and_b32 v25, 31, v0')
        e('v_lshlrev_b32 v25, 2, v25')
        e('v_add_u32 v26, 0x8000, v25')
        for i in range(4 * nsub):
            e(f'ds_read_b32 v{64 + i}, v26 offset:{128 * i}')
        k.lg0()
        for i in range(1, 4 * nsub):
            e(f'v_add_f32 v64, v64, v{64 + i}')
        e('s_lshl_b32 s40, s59, 7')
        e(f's_add_u32 s40, s40, {hex(csbase)}')
        e(f'buffer_store_dword v64, v25, {S_WS}, s40 offen')
        e('s_endpgm')

    k.label('K0_TQ')
    e('s_mov_b32 s59, s2'); e('s_mov_b32 s60, 0'); e('s_lshl_b32 s61, s59, 6')
    stage(46, 1536 * KB, 3072, 128)
    traddr('pi')
    for ct in range(2):
        for ks in range(4):
            frag(64 + (ct * 4 + ks) * 4, ks * 2048 + ct * 32, 1024)
    k.lg0()
    e('s_and_b32 s40, s59, 15'); e('s_mul_i32 s40, s40, 96')
    e('s_lshr_b32 s41, s59, 4'); e('s_add_u32 s40, s40, s41')
    e(f's_mul_i32 s41, s{sW}, 12'); e('s_add_u32 s40, s40, s41')
    e('s_lshl_b32 s40, s40, 10')
    if PWQ:
        e(f's_add_u32 s40, s40, {hex(PWQ)}')
    e('v_mov_b32 v30, 0'); e('v_mov_b32 v31, 0')
    for ct in range(2):
        for ks in range(4):
            r = 64 + (ct * 4 + ks) * 4
            e(f's_add_u32 s41, s40, {(ct * 48 + ks * 3) * 1024}')
            e(f'buffer_store_dwordx4 v[{r}:{r + 3}], v1, {S_WS}, s41 offen')
            dots(30 + ct, r)
    e('v_mov_b32 v22, v11'); e('v_mov_b32 v23, v12')
    colsum_finish([(30, 0), (31, 16)], 4, CSQ)
    k.label('K0_T3')
    e('s_sub_u32 s59, s2, 48'); e('s_mov_b32 s60, 0'); e('s_lshl_b32 s61, s59, 6')
    stage(52, 1792 * KB, 3584, 128)
    traddr('w3')
    for s in range(8):
        frag(64 + s * 4, (s >> 1) * 2048 + (s & 1) * 512, 1024)
    k.lg0()
    e('s_mul_i32 s40, s59, 9363'); e('s_lshr_b32 s40, s40, 16'); e('s_add_u32 s40, s40, s59')
    e('s_lshl_b32 s40, s40, 5')
    e(f's_lshl_b32 s41, s{sW}, 3'); e('s_add_u32 s40, s40, s41')
    e('s_lshl_b32 s40, s40, 10')
    e(f's_add_u32 s40, s40, {hex(PW3)}')
    e('v_mov_b32 v30, 0')
    for s in range(8):
        r = 64 + s * 4
        e(f's_add_u32 s41, s40, {s * 1024}')
        e(f'buffer_store_dwordx4 v[{r}:{r + 3}], v1, {S_WS}, s41 offen')
        dots(30, r)
    e('v_and_b32 v22, 31, v0'); e('v_lshrrev_b32 v23, 5, v0')
    colsum_finish([(30, 0)], 2, CS3)
    k.label('K0_T1')
    e('s_sub_u32 s59, s2, 104'); e('s_mov_b32 s60, 0'); e('s_lshl_b32 s61, s59, 6')
    stage(48, 512 * KB, 1024, 128)
    traddr('pi')
    for ct in range(2):
        for ks in range(4):
            frag(64 + (ct * 4 + ks) * 4, ks * 2048 + ct * 32, 1024)
    k.lg0()
    e('v_mov_b32 v30, 0'); e('v_mov_b32 v31, 0')
    for ct in range(2):
        for ks in range(4):
            dots(30 + ct, 64 + (ct * 4 + ks) * 4)
    e('v_mov_b32 v22, v11'); e('v_mov_b32 v23, v12')
    colsum_finish([(30, 0), (31, 16)], 4, CS1)
    k.label('K0_T4')
    e('s_sub_u32 s59, s2, 120')
    e('s_lshr_b32 s62, s59, 4')
    e('s_and_b32 s63, s59, 15')
    e('s_lshl_b32 s60, s62, 8'); e('s_lshl_b32 s61, s63, 6')
    stage(54, 1792 * KB, 1024, 64)
    traddr('rho')
    for ct in range(2):
        for ks in range(2):
            frag(64 + (ct * 2 + ks) * 4, ks * 2048 + ct * 32, 512)
    k.lg0()
    e('s_lshr_b32 s40, s63, 1'); e('s_mul_i32 s40, s40, 224')
    e('s_lshl_b32 s41, s62, 5'); e('s_add_u32 s40, s40, s41')
    e(f's_lshl_b32 s41, s{sW}, 3'); e('s_add_u32 s40, s40, s41')
    e('s_and_b32 s41, s63, 1'); e('s_lshl_b32 s41, s41, 1'); e('s_add_u32 s40, s40, s41')
    e('s_lshl_b32 s40, s40, 10')
    e(f's_add_u32 s40, s40, {hex(PW4)}')
    for ct in range(2):
        for ks in range(2):
            r = 64 + (ct * 2 + ks) * 4
            e(f's_add_u32 s41, s40, {(ks * 4 + ct) * 1024}')
            e(f'buffer_store_dwordx4 v[{r}:{r + 3}], v1, {S_WS}, s41 offen')
    k.label('K0_END')
    e('s_endpgm')
    return k.finish()


LX, LY, LZ = 0, 65536, 147456
S_WO, S_W1, S_W2, S_X, S_OUT, S_DBG = 's[8:11]', 's[12:15]', 's[16:19]', 's[20:23]', 's[24:27]', 's[28:31]'
sSLOW, sEXN, sEXP, sTO, sFLAG = 36, 37, 38, 39, 42
sEFLAG = 43
sPL, sNL = 44, 45
sWQ, sW3, sW3b, sW4 = 46, 47, 48, 49
sT16, sT1, sJ2 = 50, 51, 52
sHALO, sHALOS = 53, 54
sC = 56
sA, sB, sD = 58, 59, 60
sRT = 64
sXCC = 72
vL16, vTR, vPown, vP1, vP2, vP4, vP6 = 1, 2, 6, 7, 8, 9, 10
vF = 11
vX, vXN = 12, 28
vStat, vWd, vH = 44, 45, 46
vL16h, vProf, vOst, vH2st = 50, 51, 52, 53
vMu, vRs1 = 54, 55
W0 = 56

GK = 2 * 0.7978845608028654 * 1.4426950408889634


class Main:
    def __init__(self, opt):
        self.opt = opt
        self.k = Kern()
        self.nstamp = 0
        self.seq = []
        for l in range(2):
            self.seq += [(sWQ, n * 1024) for n in range(48)]
            self.seq += [(sW3, n * 1024) for n in range(32)] + [(sW3b, n * 1024) for n in range(32)]
            self.seq += [(sW4, n * 1024) for n in range(56)]
        self.wnext = 0
        self.dead = set()
        self.wbase = None

    def slot(self, n):
        return (n % 64) * 4

    def wq(self, l, ks, part):
        return l * 168 + ks * 3 + part

    def w3(self, l, ct, s):
        return l * 168 + 48 + ct * 32 + s

    def w4(self, l, ks, ct):
        return l * 168 + 112 + ks * 4 + ct

    def prefetch(self, count, limit=None):
        k = self.k
        done = 0
        while done < count and self.wnext < len(self.seq) and (limit is None or self.wnext < limit):
            n = self.wnext
            if n >= 64 and (n - 64) not in self.dead:
                break
            s, off = self.seq[n]
            key = (s, off // 4096)
            if self.wbase != key:
                k.e(f's_add_u32 s{sD}, s{s}, {off // 4096 * 4096}')
                self.wbase = key
            k.e(f'buffer_load_dwordx4 {ar(self.slot(n))}, v{vL16}, {S_WS}, s{sD} offen offset:{off % 4096}', ('w', n))
            self.wnext += 1
            done += 1
        return done

    def need_w(self, n):
        if self.wnext <= n:
            self.prefetch(n + 1 - self.wnext)
        assert self.wnext > n, ('weight slot not free', n)
        self.k.vmwait(('w', n))

    def stamp(self):
        if not self.opt.get('prof'):
            return
        k = self.k
        k.lg0()
        k.e('s_memtime s[62:63]')
        k.e('s_waitcnt lgkmcnt(0)')
        k.e(f'v_writelane_b32 v{vProf}, s62, {self.nstamp}')
        self.nstamp += 1

    def poll(self, vaddr, ph):
        k = self.k
        lp, ld = k.lab('POLL'), k.lab('POLLD')
        k.e(f's_mov_b32 s{sA}, {ph}')
        k.label(lp)
        k.e(f'buffer_load_dword v{vF}, v{vaddr}, {S_WS}, 0 offen sc1')
        k.vm0()
        k.e(f'v_cmp_gt_u32 vcc, s{sA}, v{vF}')
        k.e(f's_cbranch_vccz {ld}')
        k.e(f's_sub_u32 s{sTO}, s{sTO}, 1')
        k.e(f's_cbranch_scc0 {lp}')
        k.e('s_branch BAIL')
        k.label(ld)

    def stores(self, items, tag='st'):
        k = self.k
        k.alt(lambda: k.e(f's_cmp_lg_u32 s{sSLOW}, 0'),
              lambda: [k.e(t, tag) for t in items],
              lambda: [k.e(t + ' sc1', tag) for t in items])

    def flag(self, ph, export=None):
        k = self.k
        k.e(f'v_mov_b32 v{vF}, {ph}')
        if export:
            ls = k.lab('EXP')
            k.e(f's_cmp_eq_u32 s{export[0]}, 0')
            k.e(f's_cbranch_scc1 {ls}')
            k.begin_cond()
            for t in export[1]:
                k.e(t, 'ex')
            k.end_cond()
            k.label(ls)
            n_ex = len([t for t in export[1] if t.startswith('buffer')])
            l2, l3 = k.lab('EXW'), k.lab('EXW')
            k.e(f's_cbranch_scc1 {l2}')
            k.e(f's_waitcnt vmcnt({n_ex})')
            k.e(f's_branch {l3}')
            k.label(l2)
            k.e('s_waitcnt vmcnt(0)')
            k.label(l3)
            k.vm = [x for x in k.vm if x[0] == 'ex']
        else:
            k.vmwait('st')
        k.e('s_mov_b64 exec, 1')
        self.stores([f'buffer_store_dword v{vF}, off, {S_WS}, s{sFLAG}'], 'fl')
        if export:
            ls = k.lab('EXF')
            k.e(f's_cmp_eq_u32 s{export[0]}, 0')
            k.e(f's_cbranch_scc1 {ls}')
            k.begin_cond()
            k.e('s_waitcnt vmcnt(0)')
            k.e(f'buffer_store_dword v{vF}, off, {S_WS}, s{sEFLAG} sc1', 'ex')
            k.end_cond()
            k.label(ls)
        k.e('s_mov_b64 exec, -1')

    def wdma(self, srd_, region, n0, n1):
        k = self.k
        for n in range(n0, n1):
            k.e(f's_lshl_b32 s{sA}, s{sW}, 14')
            k.e(f's_add_u32 m0, s{sA}, {region + n * 1024}')
            k.e(f's_lshl_b32 s{sA}, s{sW}, 17')
            k.e(f's_add_u32 s{sA}, s{sA}, {n * 8192}')
            k.e(f'buffer_load_dwordx4 v{vWd}, {srd_}, s{sA} offen lds', 'wd')

    def tile_dma(self, vaddr, soff_reg, base, lds, n, tagf):
        k = self.k
        for c in range(n // 4):
            k.e(f's_add_u32 s{sA}, s{soff_reg}, {hex(base + c * 4096)}')
            lds(c)
            for i in range(4):
                k.e(f'buffer_load_dwordx4 v{vaddr}, {S_WS}, s{sA} offen offset:{i * 1024} sc1 lds', tagf(c))

    def init(self):
        k = self.k
        e = k.e
        e('s_cmp_ge_u32 s2, 256')
        e('s_cbranch_scc1 BAIL')
        e('s_load_dwordx2 s[76:77], s[0:1], 0')
        e('s_load_dwordx2 s[78:79], s[0:1], 16')
        e('s_load_dwordx4 s[80:83], s[0:1], 32')
        e('s_load_dwordx4 s[84:87], s[0:1], 64')
        e('s_load_dwordx2 s[88:89], s[0:1], 80')
        role_decode(k)
        e(f's_getreg_b32 s{sXCC}, hwreg(HW_REG_XCC_ID)')
        e(f's_and_b32 s{sXCC}, s{sXCC}, 7')
        e(f's_mov_b32 s{sTO}, 0x80000')
        e(f's_lshl_b32 s{sT16}, s{sRTG}, 14')
        e(f's_lshl_b32 s{sT1}, s{sRTG}, 10')
        e(f's_lshl_b32 s{sJ2}, s{sJ}, 11')
        e(f's_lshl_b32 s{sA}, s{sJ}, 2')
        e(f's_add_u32 s{sA}, s{sA}, s{sW}')
        e(f's_mul_i32 s{sWQ}, s{sA}, {48 * 1024}')
        if PWQ:
            e(f's_add_u32 s{sWQ}, s{sWQ}, {hex(PWQ)}')
        e(f's_lshl_b32 s{sW3}, s{sA}, 16')
        e(f's_add_u32 s{sW3}, s{sW3}, {hex(PW3)}')
        e(f's_cmp_eq_u32 s{sW}, 3')
        e(f's_cselect_b32 s{sB}, 0, 0x8000')
        e(f's_add_u32 s{sW3b}, s{sW3}, s{sB}')
        e(f's_mul_i32 s{sW4}, s{sA}, {56 * 1024}')
        e(f's_add_u32 s{sW4}, s{sW4}, {hex(PW4)}')
        e('s_waitcnt lgkmcnt(0)')
        srd(k, 4, 88, WSREC)
        self.prefetch(48)
        srd(k, 20, 76, 2 * MB)
        tile_rowmajor_addr(k, W0, W0 + 1, W0 + 2, 3)
        for ct in range(4):
            e(f'buffer_load_dwordx2 v[{W0 + 4 + 2 * ct}:{W0 + 5 + 2 * ct}], v{W0}, {S_X}, 0 offen offset:{32 * ct}', 'x')
        srd(k, 8, 78, 512 * KB)
        srd(k, 12, 80, 512 * KB)
        srd(k, 16, 82, 512 * KB)
        srd(k, 24, 84, 2 * MB)
        srd(k, 28, 86, 256)
        lskip = k.lab('ANN')
        e(f's_cmp_lg_u32 s{sW}, 0')
        e(f's_cbranch_scc1 {lskip}')
        k.begin_cond()
        e(f's_lshl_b32 s{sA}, s{sXCC}, 2')
        e(f's_lshl_b32 s{sA}, 1, s{sA}')
        e(f'v_mov_b32 v{vF}, s{sA}')
        e(f's_lshl_b32 s{sB}, s{sGRP}, 2')
        e('s_mov_b64 exec, 1')
        e(f'buffer_atomic_add v{vF}, off, {S_DBG}, s{sB}')
        e('s_mov_b64 exec, -1')
        k.end_cond()
        k.label(lskip)
        m, g, t0, t1, t2 = W0 + 12, W0 + 13, W0 + 14, W0 + 15, W0 + 16
        e(f'v_and_b32 v{m}, 15, v0')
        e(f'v_lshrrev_b32 v{g}, 4, v0')
        stat_store_addr(k, vStat, t0, t1)
        e(f'v_lshrrev_b32 v{t0}, 2, v{m}')
        e(f'v_lshl_add_u32 v{t1}, v{g}, 2, v{t0}')
        e(f'v_lshrrev_b32 v{t2}, 1, v{t1}')
        e(f'v_and_b32 v{t2}, 3, v{t2}')
        e(f'v_lshlrev_b32 v{t1}, 7, v{t1}')
        e(f'v_and_b32 v{t0}, 3, v0')
        e(f'v_lshl_add_u32 v{t1}, v{t0}, 3, v{t1}')
        for ct in range(4):
            e(f'v_xor_b32 v{t0}, {ct}, v{t2}')
            e(f'v_lshl_add_u32 v{vTR + ct}, v{t0}, 5, v{t1}')
        e(f'v_lshrrev_b32 v{t0}, 3, v0')
        e(f'v_lshlrev_b32 v{vWd}, 10, v{t0}')
        e(f'v_and_b32 v{t0}, 7, v0')
        e(f'v_lshlrev_b32 v{t1}, 1, v{g}')
        e(f'v_xor_b32 v{t0}, v{t0}, v{t1}')
        e(f'v_lshl_add_u32 v{vWd}, v{t0}, 4, v{vWd}')
        e(f's_lshl_b32 s{sA}, s{sJ}, 7')
        e(f'v_add_u32 v{vWd}, s{sA}, v{vWd}')
        e(f's_lshl_b32 s{sA}, s{sRTG}, 5')
        e(f's_add_u32 s{sA}, s{sA}, {hex(FLG)}')
        e(f's_lshl_b32 s{sB}, s{sJ}, 2')
        e(f's_add_u32 s{sFLAG}, s{sA}, s{sB}')
        e(f'v_and_b32 v{t0}, 7, v0')
        e(f'v_lshlrev_b32 v{t0}, 2, v{t0}')
        e(f'v_add_u32 v{vPown}, s{sA}, v{t0}')
        e(f's_lshl_b32 s{sA}, s{sGRP}, 7')
        e(f's_add_u32 s{sA}, s{sA}, {hex(FLG)}')
        e(f'v_and_b32 v{t0}, 31, v0')
        e(f'v_lshlrev_b32 v{t0}, 2, v{t0}')
        e(f'v_add_u32 v{vP2}, s{sA}, v{t0}')
        e(f's_lshl_b32 s{sB}, s{sW}, 3')
        e(f's_add_u32 s{sA}, s{sA}, s{sB}')
        e(f'v_and_b32 v{t0}, 3, v0')
        e(f'v_lshlrev_b32 v{t0}, 5, v{t0}')
        e(f'v_and_b32 v{t1}, 4, v0')
        e(f'v_add3_u32 v{vP6}, v{t0}, v{t1}, s{sA}')
        e(f's_cmp_eq_u32 s{sGRP}, 0')
        e(f's_cselect_b32 s{sA}, {hex(OOB)}, 0')
        e(f'v_add_u32 v{vL16h}, s{sA}, v{vL16}')
        e(f's_lshl_b32 s{sA}, s{sGRP}, 2')
        e(f's_max_u32 s{sA}, s{sA}, 1')
        e(f's_sub_u32 s{sA}, s{sA}, 1')
        e(f's_lshl_b32 s{sHALO}, s{sA}, 14')
        if XA:
            e(f's_add_u32 s{sHALO}, s{sHALO}, {hex(XA)}')
        e(f's_lshl_b32 s{sHALOS}, s{sA}, 10')
        e(f's_add_u32 s{sHALOS}, s{sHALOS}, {hex(SA)}')
        e(f'v_lshrrev_b32 v{t0}, 5, v0')
        e(f'v_and_b32 v{t1}, 31, v0')
        e(f'v_lshlrev_b32 v{t1}, 4, v{t1}')
        e(f'v_lshl_add_u32 v{vOst}, v{t0}, 14, v{t1}')
        e(f's_and_b32 s{sA}, s{sW}, 1')
        e(f's_lshl_b32 s{sA}, s{sA}, 9')
        e(f'v_add_u32 v{vOst}, s{sA}, v{vOst}')
        e(f'v_and_b32 v{t1}, 1, v{g}')
        e(f'v_mul_u32_u24 v{t1}, {56 * 1024}, v{t1}')
        e(f'v_lshl_add_u32 v{t1}, v{t0}, 8, v{t1}')
        e(f'v_lshl_add_u32 v{vH2st}, v{m}, 4, v{t1}')
        for u in range(4):
            e(f's_add_u32 s{sA}, s{sW}, {u}')
            e(f's_and_b32 s{sA}, s{sA}, 3')
            if u:
                e(f's_mul_i32 s{sRT + 3 + u}, s{sA}, {12 * 1024}')
                e(f's_add_u32 s{sRT + 3 + u}, s{sRT + 3 + u}, {LX + (3 - u) * 4096}')
            e(f's_lshl_b32 s{sB}, s{sGRP}, 2')
            e(f's_add_u32 s{sA}, s{sA}, s{sB}')
            e(f's_mul_i32 s{sA}, s{sA}, 56')
            e(f's_mul_i32 s{sB}, s{sW}, 14')
            e(f's_add_u32 s{sA}, s{sA}, s{sB}')
            e(f's_lshl_b32 s{sRT + u}, s{sA}, 10')
        c = fbits(0.25 * 1.4426950408889634)
        e(f's_mov_b32 s{sC}, {c}')
        e(f's_mov_b32 s{sC + 1}, {c}')
        k.vmwait('x')
        unpack_bf16(k, vX, W0 + 4, 8)
        self.stamp()

    def placement(self):
        k = self.k
        e = k.e
        t0, t1, t2, t3, m, g = range(W0, W0 + 6)
        lp, ld = k.lab('PLC'), k.lab('PLCD')
        e(f'v_min_u32 v{t0}, 2, v0')
        e(f'v_add_u32 v{t0}, s{sGRP}, v{t0}')
        e(f'v_max_u32 v{t0}, 1, v{t0}')
        e(f'v_min_u32 v{t0}, 32, v{t0}')
        e(f'v_subrev_u32 v{t0}, 1, v{t0}')
        e(f'v_lshlrev_b32 v{t0}, 2, v{t0}')
        e(f's_mov_b32 s{sB}, 0x01010101')
        k.label(lp)
        e(f'buffer_load_dword v{t1}, v{t0}, {S_DBG}, 0 offen sc1')
        k.vm0()
        e(f'v_and_b32 v{t2}, 0x0f0f0f0f, v{t1}')
        e(f'v_lshrrev_b32 v{t3}, 4, v{t1}')
        e(f'v_and_b32 v{t3}, 0x0f0f0f0f, v{t3}')
        e(f'v_add_u32 v{t2}, v{t2}, v{t3}')
        e(f'v_mul_lo_u32 v{t2}, v{t2}, s{sB}')
        e(f'v_lshrrev_b32 v{t2}, 24, v{t2}')
        e(f'v_cmp_ne_u32 vcc, 8, v{t2}')
        e(f's_cbranch_vccz {ld}')
        e(f's_sub_u32 s{sTO}, s{sTO}, 1')
        e(f's_cbranch_scc0 {lp}')
        e('s_branch BAIL')
        k.label(ld)
        e(f's_lshl_b32 s{sA}, s{sXCC}, 2')
        e(f's_lshl_b32 s{sA}, 8, s{sA}')
        e(f'v_cmp_eq_u32 vcc, s{sA}, v{t1}')
        e(f's_mov_b32 s{sA}, vcc_lo')
        if self.opt.get('force_slow'):
            e(f's_mov_b32 s{sA}, 0')
        if self.opt.get('force_export'):
            e(f's_and_b32 s{sA}, s{sA}, 2')
        e(f's_bitcmp1_b32 s{sA}, 1')
        e(f's_cselect_b32 s{sSLOW}, 0, 1')
        e(f's_and_b32 s{sB}, s{sA}, 3')
        e(f's_cmp_eq_u32 s{sB}, 3')
        e(f's_cselect_b32 s{sPL}, 1, 0')
        e(f's_and_b32 s{sB}, s{sA}, 6')
        e(f's_cmp_eq_u32 s{sB}, 6')
        e(f's_cselect_b32 s{sNL}, 1, 0')
        e(f's_cmp_eq_u32 s{sGRP}, 0')
        e(f's_cselect_b32 s{sPL}, 1, s{sPL}')
        e(f's_cmp_eq_u32 s{sGRP}, 31')
        e(f's_cselect_b32 s{sNL}, 1, s{sNL}')
        e(f's_xor_b32 s{sA}, s{sNL}, 1')
        e(f's_cmp_eq_u32 s{sW}, 3')
        e(f's_cselect_b32 s{sEXN}, s{sA}, 0')
        e(f's_xor_b32 s{sA}, s{sPL}, 1')
        e(f's_cmp_eq_u32 s{sW}, 0')
        e(f's_cselect_b32 s{sEXP}, s{sA}, 0')
        e(f's_cselect_b32 s{sB}, 128, 0')
        e(f's_or_b32 s{sEXP}, s{sEXP}, s{sEXN}')
        e(f's_lshl_b32 s{sA}, s{sGRP}, 8')
        e(f's_add_u32 s{sA}, s{sA}, s{sB}')
        e(f's_lshl_b32 s{sB}, s{sJ}, 2')
        e(f's_add_u32 s{sA}, s{sA}, s{sB}')
        e(f's_add_u32 s{sEFLAG}, s{sA}, {hex(EF)}')
        e(f's_lshl_b32 s{sA}, s{sRTG}, 5')
        e(f's_add_u32 s93, s{sA}, {hex(FLG)}')
        e(f's_lshl_b32 s{sB}, s{sGRP}, 8')
        e(f's_add_u32 s94, s{sB}, {hex(EF - 256)}')
        e(f's_add_u32 s95, s{sB}, {hex(EF + 256 + 128)}')
        e(f's_lshl_b32 s{sB}, s{sGRP}, 7')
        e(f's_add_u32 s92, s{sB}, {hex(FLG - 32)}')
        e(f's_cmp_eq_u32 s{sPL}, 1')
        e('s_cselect_b32 s92, s92, s94')
        e(f's_cmp_eq_u32 s{sGRP}, 0')
        e('s_cselect_b32 s92, s93, s92')
        e('s_sub_u32 s90, s93, 32')
        e(f's_cmp_eq_u32 s{sW}, 0')
        e('s_cselect_b32 s90, s92, s90')
        e('s_add_u32 s91, s93, 32')
        e(f's_cmp_eq_u32 s{sNL}, 1')
        e('s_cselect_b32 s95, s91, s95')
        e(f's_cmp_eq_u32 s{sGRP}, 31')
        e('s_cselect_b32 s95, s93, s95')
        e(f's_cmp_eq_u32 s{sW}, 3')
        e('s_cselect_b32 s91, s95, s91')
        e(f'v_and_b32 v{t0}, 7, v0')
        e(f'v_lshlrev_b32 v{t0}, 2, v{t0}')
        e(f'v_and_b32 v{t1}, 8, v0')
        e(f'v_cmp_ne_u32 vcc, 0, v{t1}')
        e(f'v_add_u32 v{t2}, s92, v{t0}')
        e(f'v_cndmask_b32 v{vP1}, v{vPown}, v{t2}, vcc')
        e(f'v_and_b32 v{t1}, 0x1a, v0')
        e(f'v_cmp_eq_u32 vcc, 8, v{t1}')
        e(f'v_add_u32 v{t2}, s90, v{t0}')
        e(f'v_cndmask_b32 v{vP4}, v{vPown}, v{t2}, vcc')
        e(f'v_cmp_eq_u32 vcc, 0x12, v{t1}')
        e(f'v_add_u32 v{t2}, s91, v{t0}')
        e(f'v_cndmask_b32 v{vP4}, v{vP4}, v{t2}, vcc')
        e(f's_lshl_b32 s{sA}, s{sGRP}, 15')
        e(f's_add_u32 s{sA}, s{sA}, {hex(EXPX - 32768)}')
        e(f's_add_u32 s{sB}, s{sA}, 0x4000')
        e(f's_cmp_eq_u32 s{sPL}, 1')
        e(f's_cselect_b32 s96, s{sHALO}, s{sA}')
        e(f's_cselect_b32 s97, s{sHALOS}, s{sB}')
        e(f'v_and_b32 v{m}, 15, v0')
        e(f'v_lshrrev_b32 v{g}, 4, v0')
        e(f's_lshl_b32 s{sA}, s{sGRP}, 15')
        e(f's_add_u32 s94, s{sA}, {hex(EXPH - H - 32768)}')
        e(f's_add_u32 s95, s{sA}, {hex(EXPH - H + 32768 + 16384)}')
        e(f's_sub_u32 s90, s{sT16}, 0x4000')
        e(f's_add_u32 s91, s{sT16}, 0x4000')
        e(f's_cmp_eq_u32 s{sPL}, 1')
        e('s_cselect_b32 s94, s90, s94')
        e(f's_cmp_eq_u32 s{sGRP}, 0')
        e(f's_cselect_b32 s94, {hex(OOB)}, s94')
        e(f's_cmp_eq_u32 s{sW}, 0')
        e('s_cselect_b32 s90, s94, s90')
        e(f's_cmp_eq_u32 s{sNL}, 1')
        e('s_cselect_b32 s95, s91, s95')
        e(f's_cmp_eq_u32 s{sGRP}, 31')
        e(f's_cselect_b32 s95, {hex(OOB)}, s95')
        e(f's_cmp_eq_u32 s{sW}, 3')
        e('s_cselect_b32 s91, s95, s91')
        for q, d in enumerate((-1, 1, -2, 2)):
            e(f'v_add_u32 v{t0}, {d}, v{m}')
            e(f'v_cmp_lt_u32 vcc, 15, v{t0}')
            e(f'v_and_b32 v{t0}, 15, v{t0}')
            e(f'v_lshlrev_b32 v{t0}, 4, v{t0}')
            e(f'v_lshl_add_u32 v{t0}, v{g}, 8, v{t0}')
            e(f'v_mov_b32 v{t1}, s{sT16}')
            e(f'v_mov_b32 v{t2}, s{90 if d < 0 else 91}')
            e(f'v_cndmask_b32 v{t1}, v{t1}, v{t2}, vcc')
            e(f'v_add_u32 v{vH + q}, v{t0}, v{t1}')

    def p1(self, l):
        k = self.k
        e = k.e
        L = lb(l)
        ACC = W0
        AF = W0 + 56
        ST, SH = W0 + 88, W0 + 92
        CSq, CSk, CSv = W0 + 96, W0 + 100, W0 + 104
        vRd, vM4, vG16, T = W0 + 105, W0 + 106, W0 + 107, W0 + 108
        CC, CP, CP0, MK, ONE = W0 + 112, W0 + 116, W0 + 120, W0 + 124, W0 + 128
        acc = lambda t, p: (ACC + 48 + (p - 1) * 4) if t < 0 else ACC + t * 12 + p * 4
        if l:
            self.poll(vP1, 6 * l)
        self.stamp()
        halo, halos = (96, 97) if l else (sHALO, sHALOS)
        e(f's_add_u32 s{sB}, s{sT1}, {hex(L + SA)}')
        e(f'buffer_load_dwordx4 {vr(ST, 4)}, v{vL16}, {S_WS}, s{sB} offen sc1', 'stat')

        def lds_own(c):
            e(f's_lshl_b32 s{sB}, s{sW}, 14')
            e(f's_add_u32 m0, s{sB}, {LY + c * 4096}')
        self.tile_dma(vL16, sT16, L + XA, lds_own, 16, lambda c: ('a', c))
        e(f's_add_u32 s{sB}, s{halos}, {hex(L)}')
        e(f'buffer_load_dwordx4 {vr(SH, 4)}, v{vL16h}, {S_WS}, s{sB} offen sc1', 'stath')
        e(f's_lshl_b32 s{sB}, s{sW}, 12')
        e(f's_add_u32 s61, s{sB}, s{halo}')

        def lds_halo(c):
            e(f's_add_u32 m0, s{sB}, {LY + 65536}')
        self.tile_dma(vL16h, 61, L, lds_halo, 4, lambda c: 'halo')
        e(f's_lshl_b32 s{sA}, s{sJ}, 2')
        e(f's_add_u32 s{sA}, s{sA}, s{sW}')
        e(f's_lshl_b32 s{sA}, s{sA}, 6')
        e(f's_add_u32 s{sA}, s{sA}, {hex(CSQ)}')
        e(f'v_and_b32 v{vM4}, 15, v0')
        e(f'v_lshlrev_b32 v{vM4}, 2, v{vM4}')
        e(f'v_and_b32 v{vG16}, 48, v0')
        e(f'buffer_load_dwordx4 {vr(CSq, 4)}, v{vG16}, {S_WS}, s{sA} offen', 'cs')
        e(f'buffer_load_dwordx4 {vr(CSk, 4)}, v{vG16}, {S_WS}, s{sA} offen offset:2048', 'cs')
        e(f's_add_u32 s{sA}, s{sA}, 0x1000')
        e(f'buffer_load_dword v{CSv}, v{vM4}, {S_WS}, s{sA} offen', 'cs')
        self.prefetch(64, self.wq(l, 16, 0))
        e(f'v_add_u32 v{vRd}, {LY}, v{vL16}')
        e(f'v_add_u32 v{vM4}, {LZ}, v{vM4}')
        e(f'v_add_u32 v{vG16}, {LZ}, v{vG16}')
        m, g = T, T + 1
        e(f'v_and_b32 v{m}, 15, v0')
        e(f'v_lshrrev_b32 v{g}, 2, v0')
        e(f'v_and_b32 v{g}, 12, v{g}')
        e(f'v_sub_u32 v{g}, v{m}, v{g}')
        e(f'v_mov_b32 v{ONE}, 0xf149f2ca')
        e(f's_cmp_eq_u32 s{sGRP}, 0')
        e(f's_cselect_b64 s[90:91], -1, 0')
        for r in range(4):
            e(f'v_subrev_u32 v{T + 2}, {r}, v{g}')
            e(f'v_and_b32 v{T + 3}, 0x80000001, v{T + 2}')
            e(f'v_cmp_eq_u32 vcc, 0, v{T + 3}')
            e(f'v_cndmask_b32 v{CC + r}, v{ONE}, 0, vcc')
            e(f'v_cmp_eq_u32 vcc, 0x80000000, v{T + 3}')
            e(f'v_cndmask_b32 v{CP + r}, v{ONE}, 0, vcc')
            e(f'v_cndmask_b32 v{CP0 + r}, v{CP + r}, v{ONE}, s[90:91]')
        for a in range(2):
            for src, dst in ((CP, MK + a), (CC, MK + 2 + a)):
                e(f'v_cmp_eq_u32 vcc, 0, v{src + 2 * a}')
                e(f'v_cndmask_b32 v{T + 2}, 0, -1, vcc')
                e(f'v_cmp_eq_u32 vcc, 0, v{src + 2 * a + 1}')
                e(f'v_cndmask_b32 v{T + 3}, 0, -1, vcc')
                e(f'v_and_b32 v{T + 2}, 0xffff, v{T + 2}')
                e(f'v_and_b32 v{T + 3}, 0xffff0000, v{T + 3}')
                e(f'v_or_b32 v{dst}, v{T + 2}, v{T + 3}')
        for r in range(4):
            e(f'v_mov_b32 v{ONE + r}, 0x3f803f80')

        def stats_to_lds(src, tag, idx_expr):
            k.vmwait(tag)
            stat_combine(k, src, T, T + 1)
            e(f'v_add_f32 v{T + 1}, {fbits(1e-5)}, v{T + 1}')
            e(f'v_rsq_f32 v{T + 1}, v{T + 1}')
            e(f'v_mul_f32 v{T}, v{T + 1}, -v{T}')
            idx_expr()
            e(f'ds_write2_b32 v{T + 2}, v{T + 1}, v{T} offset0:0 offset1:128', 'sw')

        def own_idx():
            e(f's_lshl_b32 s{sA}, s{sW}, 6')
            e(f's_add_u32 s{sA}, s{sA}, 64')
            e(f'v_add_u32 v{T + 2}, s{sA}, v{vM4}')
        stats_to_lds(ST, 'stat', own_idx)
        stats_to_lds(SH, 'stath', lambda: e(f'v_mov_b32 v{T + 2}, v{vM4}'))

        def rd(ks, t, buf):
            off = (t * 16 + ks) * 1024
            if off < 65536:
                e(f'ds_read_b128 {vr(AF + buf * 16 + (t & 3) * 4, 4)}, v{vRd} offset:{off}', ('f', ks, t))
            else:
                e(f'ds_read_b128 {vr(AF + buf * 16 + (ks & 3) * 4, 4)}, v{T} offset:{off - 65536}', ('f', ks, t))

        k.vmwait(('a', 0))
        k.lgwait('sw')
        e('s_barrier')
        self.stamp()
        for t in range(4):
            rd(0, t, 0)
        for ks in range(16):
            if ks % 4 == 3 and ks < 15:
                k.vmwait(('a', (ks >> 2) + 1))
                e('s_barrier')
            if ks < 15:
                for t in range(4):
                    rd(ks + 1, t, (ks + 1) & 1)
            if ks == 4:
                self.wdma(S_WO, LX, 0, 16)
            self.need_w(self.wq(l, ks, 2))
            for t in range(4):
                k.lgwait(('f', ks, t))
                f = vr(AF + (ks & 1) * 16 + t * 4, 4)
                for p in range(3):
                    w = ar(self.slot(self.wq(l, ks, p)))
                    cin = vr(acc(t, p), 4) if ks else '0'
                    ops = (w, f) if p < 2 else (f, w)
                    e(f'v_mfma_f32_16x16x32_bf16 {vr(acc(t, p), 4)}, {ops[0]}, {ops[1]}, {cin}')
            self.dead.add(self.wq(l, ks, 0))
            if ks >= 8:
                self.prefetch(self.opt.get('p1_pf', 2))
        k.vmwait('halo')
        e('s_barrier')
        e(f'v_add_u32 v{T}, {LY + 65536}, v{vL16}')
        for ks in range(4):
            rd(ks, 4, 0)
        for ks in range(16):
            if ks % 4 == 0 and ks + 4 < 16:
                for q in range(4):
                    rd(ks + 4 + q, 4, ((ks >> 2) + 1) & 1)
            k.lgwait(('f', ks, 4))
            f = vr(AF + ((ks >> 2) & 1) * 16 + (ks & 3) * 4, 4)
            for p in (1, 2):
                w = ar(self.slot(self.wq(l, ks, p)))
                cin = vr(acc(-1, p), 4) if ks else '0'
                ops = (w, f) if p < 2 else (f, w)
                e(f'v_mfma_f32_16x16x32_bf16 {vr(acc(-1, p), 4)}, {ops[0]}, {ops[1]}, {cin}')
                self.dead.add(self.wq(l, ks, p))
        SL = AF
        SV = W0 + 132
        for t in range(5):
            e(f'ds_read2_b32 {vr(SL + 2 * t, 2)}, v{vM4} offset0:{16 * t} offset1:{128 + 16 * t}', ('sl', t))
            e(f'ds_read_b128 {vr(SV + 8 * t, 4)}, v{vG16} offset:{64 * t}', ('sl', t))
            e(f'ds_read_b128 {vr(SV + 8 * t + 4, 4)}, v{vG16} offset:{512 + 64 * t}', ('sl', t))
        k.vmwait('wd')
        k.vmwait('cs')
        k.lg0()
        e('s_barrier')
        self.stamp()
        self.wdma(S_W1, LY, 0, self.opt.get('w1_a', 10))
        KP, QP, VP = AF + 10, AF + 20, W0 + 172
        U = W0 + 182

        def norm_t(dst, a, cs, t):
            for h in range(2):
                pk(k, 'mul', U + 2 * h, cs + 2 * h, ('b', SL + 2 * (t + 1) + 1))
            for h in range(2):
                pk(k, 'fma', U + 2 * h, a + 2 * h, ('b', SL + 2 * (t + 1)), U + 2 * h)
            for h in range(2):
                e(f'v_cvt_pk_bf16_f32 v{dst + h}, v{U + 2 * h}, v{U + 2 * h + 1}')

        for t in (0, 1, 2, 3, -1):
            norm_t(KP + 2 * (t + 1), acc(t, 1), CSk, t)
            if t >= 0:
                norm_t(QP + 2 * t, acc(t, 0), CSq, t)
            sv = SV + 8 * (t + 1)
            for h in range(2):
                pk(k, 'mul', U + 4 + 2 * h, sv + 4 + 2 * h, ('b', CSv))
            for h in range(2):
                pk(k, 'fma', U + 4 + 2 * h, acc(t, 2) + 2 * h, sv + 2 * h, U + 4 + 2 * h)
            for h in range(2):
                e(f'v_cvt_pk_bf16_f32 v{VP + 2 * (t + 1) + h}, v{U + 4 + 2 * h}, v{U + 5 + 2 * h}')
        SC = ACC
        for t in range(4):
            e(f'v_mfma_f32_16x16x16_bf16 {vr(SC + 8 * t, 4)}, {vr(KP + 2 * t, 2)}, {vr(QP + 2 * t, 2)}, {vr(CP0 if t == 0 else CP, 4)}')
            e(f'v_mfma_f32_16x16x16_bf16 {vr(SC + 8 * t + 4, 4)}, {vr(KP + 2 * t + 2, 2)}, {vr(QP + 2 * t, 2)}, {vr(CC, 4)}')
        LG, MX = SV, SV + 8
        for t in range(4):
            s = SC + 8 * t
            for a in range(2):
                e(f'v_max3_f32 v{LG + 2 * t + a}, v{s + 2 * a}, v{s + 2 * a + 1}, v{s + 4 + 2 * a}')
            for a in range(2):
                e(f'v_max_f32 v{LG + 2 * t + a}, v{LG + 2 * t + a}, v{s + 5 + 2 * a}')
            e(f'v_max_f32 v{MX + t}, v{LG + 2 * t}, v{LG + 2 * t + 1}')
        e(f'v_permlane32_swap_b32 v{MX}, v{MX + 1}')
        e(f'v_permlane32_swap_b32 v{MX + 2}, v{MX + 3}')
        e(f'v_max_f32 v{MX}, v{MX}, v{MX + 1}')
        e(f'v_max_f32 v{MX + 2}, v{MX + 2}, v{MX + 3}')
        e(f'v_permlane16_swap_b32 v{MX}, v{MX + 2}')
        e(f'v_max_f32 v{MX}, v{MX}, v{MX + 2}')
        e(f'v_mul_f32 v{MX}, s{sC}, -v{MX}')
        e(f'v_mov_b32 v{MX + 2}, v{MX}')
        e(f'v_permlane16_swap_b32 v{MX}, v{MX + 2}')
        e(f'v_mov_b32 v{MX + 1}, v{MX}')
        e(f'v_mov_b32 v{MX + 3}, v{MX + 2}')
        e(f'v_permlane32_swap_b32 v{MX}, v{MX + 1}')
        e(f'v_permlane32_swap_b32 v{MX + 2}, v{MX + 3}')
        for t in range(4):
            pk(k, 'fma', LG + 2 * t, LG + 2 * t, f's[{sC}:{sC + 1}]', ('b', MX + t))
        for i in range(8):
            e(f'v_exp_f32 v{LG + i}, v{LG + i}')
        for i in range(8):
            e(f'v_cvt_pk_bf16_f32 v{LG + i}, v{LG + i}, v{LG + i}')
        PF = SV + 16
        for t in range(4):
            for q in range(4):
                e(f'v_and_b32 v{PF + 4 * t + q}, v{MK + q}, v{LG + 2 * t + (q & 1)}')
        OA, LS_ = ACC, ACC + 16
        for t in range(4):
            e(f'v_mfma_f32_16x16x32_bf16 {vr(LS_ + 4 * t, 4)}, {vr(ONE, 4)}, {vr(PF + 4 * t, 4)}, 0')
            e(f'v_mfma_f32_16x16x32_bf16 {vr(OA + 4 * t, 4)}, {vr(VP + 2 * t, 4)}, {vr(PF + 4 * t, 4)}, 0')
        for t in range(4):
            e(f'v_rcp_f32 v{LS_ + 4 * t}, v{LS_ + 4 * t}')
        OP = SV
        for t in range(4):
            for h in range(2):
                pk(k, 'mul', OA + 4 * t + 2 * h, OA + 4 * t + 2 * h, ('b', LS_ + 4 * t))
        for t in range(4):
            for h in range(2):
                e(f'v_cvt_pk_bf16_f32 v{OP + 2 * t + h}, v{OA + 4 * t + 2 * h}, v{OA + 4 * t + 2 * h + 1}')
        for pr in range(2):
            for h in range(2):
                e(f'v_permlane32_swap_b32 v{OP + 4 * pr + h}, v{OP + 4 * pr + 2 + h}')
        if l == 0:
            self.placement()
        e(f's_lshl_b32 s{sA}, s{sGRP}, 16')
        e(f's_add_u32 s{sA}, s{sA}, s{sJ2}')
        e(f's_lshr_b32 s{sB}, s{sW}, 1')
        e(f's_lshl_b32 s{sB}, s{sB}, 10')
        e(f's_add_u32 s{sA}, s{sA}, s{sB}')
        e(f's_add_u32 s{sA}, s{sA}, {hex(L + O)}')
        e(f's_add_u32 s{sB}, s{sA}, 0x8000')
        self.stores([f'buffer_store_dwordx4 {vr(OP, 4)}, v{vOst}, {S_WS}, s{sA} offen',
                     f'buffer_store_dwordx4 {vr(OP + 4, 4)}, v{vOst}, {S_WS}, s{sB} offen'])
        self.flag(6 * l + 1)
        self.stamp()

    def small(self, l, p):
        k = self.k
        e = k.e
        L = lb(l)
        PRE = 4
        AF = W0
        WF = W0 + 64
        TRA = W0 + 128
        ACC = W0 + 132
        CSR = W0 + 148
        ST = W0 + 164
        T = W0 + 168
        half = 1024 if p == 2 else 2048
        if p == 2:
            e(f'v_lshrrev_b32 v{T}, 5, v0')
            for ct in range(4):
                e(f'v_lshl_add_u32 v{TRA + ct}, v{T}, 10, v{vTR + ct}')
            tra = TRA
        elif p == 3:
            for ct in range(4):
                e(f'v_add_u32 v{TRA + ct}, {LY}, v{vTR + ct}')
            tra = TRA
        else:
            tra = vTR

        def wread(ks):
            for ct in range(4):
                r = WF + (ks % PRE) * 16 + ct * 4
                e(f'ds_read_b64_tr_b16 {vr(r, 2)}, v{tra + ct} offset:{ks * 4096}', ('wf', ks))
                e(f'ds_read_b64_tr_b16 {vr(r + 2, 2)}, v{tra + ct} offset:{ks * 4096 + half}', ('wf', ks))
        if p == 2:
            self.wdma(S_W1, LY, self.opt.get('w1_a', 10), 16)
        if p == 3:
            self.wdma(S_W2, LX, 0, self.opt.get('w2_a', 6))
            e(f's_lshl_b32 s{sA}, s{sJ}, 8')
            e(f's_add_u32 s{sA}, s{sA}, {hex(CS1)}')
            e(f'v_and_b32 v{T}, 48, v0')
            for ct in range(4):
                e(f'buffer_load_dwordx4 {vr(CSR + 4 * ct, 4)}, v{T}, {S_WS}, s{sA} offen offset:{64 * ct}', 'cs')
        if p == 4:
            self.prefetch(self.opt.get('p4_h', 6))
        for ks in range(PRE):
            wread(ks)
        self.poll({2: vP2, 3: vPown, 4: vP4}[p], 6 * l + p - 1)
        self.stamp()
        src = {2: O, 3: XB, 4: H}[p]
        if p == 3:
            e(f's_add_u32 s{sB}, s{sT1}, {hex(L + SB)}')
            e(f'buffer_load_dwordx4 {vr(ST, 4)}, v{vL16}, {S_WS}, s{sB} offen sc1', 'stat')
        for ks in range(16):
            if ks % 4 == 0:
                if p == 4:
                    e(f's_mov_b32 s{sA}, {hex(L + H + ks * 1024)}')
                else:
                    e(f's_add_u32 s{sA}, s{sT16}, {hex(L + src + ks * 1024)}')
            va = vH + (ks >> 2) if p == 4 else vL16
            e(f'buffer_load_dwordx4 {vr(AF + 4 * ks, 4)}, v{va}, {S_WS}, s{sA} offen offset:{(ks & 3) * 1024} sc1', ('a', ks))
        if p == 3:
            self.wdma(S_W2, LX, self.opt.get('w2_a', 6), 16)
        else:
            self.prefetch(self.opt.get('p24_a', 4))
        acc = {2: vX, 3: ACC, 4: vXN}[p]
        cA, cB, cI = T + 2, T + 3, T + 4
        if p == 3:
            k.vmwait('stat')
            var = T + 1
            stat_combine(k, ST, vMu, var)
            e(f'v_add_f32 v{T}, {fbits(1e-5)}, v{var}')
            e(f'v_rsq_f32 v{vRs1}, v{T}')
            e(f'v_mul_f32 v{T}, v{vRs1}, v{vRs1}')
            e(f'v_mul_f32 v{T}, v{T}, v{var}')
            e(f'v_add_f32 v{T}, {fbits(1e-5)}, v{T}')
            e(f'v_rsq_f32 v{T}, v{T}')
            e(f'v_mul_f32 v{T}, v{T}, v{vRs1}')
            e(f'v_rcp_f32 v{cI}, v{T}')
            e(f'v_mul_f32 v{cA}, {fbits(-GK)}, v{T}')
            e(f'v_mul_f32 v{T}, v{T}, v{T}')
            e(f'v_mul_f32 v{cB}, {fbits(0.044715)}, v{T}')
            e(f'v_mul_f32 v{cB}, v{cB}, v{cA}')
            for i in range(8):
                pk(k, 'mul', ACC + 2 * i, CSR + 2 * i, ('b', vMu), neg=[0, 1])
            e(f'v_mul_f32 v{T}, v{vRs1}, -v{vMu}')
            for i in range(8):
                pk(k, 'fma', vXN + 2 * i, vX + 2 * i, ('b', vRs1), ('b', T))
        for ks in range(16):
            k.wait_both(('a', ks), ('wf', ks))
            for ct in range(4):
                r = WF + (ks % PRE) * 16 + ct * 4
                e(f'v_mfma_f32_16x16x32_bf16 {vr(acc + 4 * ct, 4)}, {vr(r, 4)}, {vr(AF + 4 * ks, 4)}, {vr(acc + 4 * ct, 4)}')
            if ks + PRE < 16:
                wread(ks + PRE)
        self.stamp()
        OUT = AF
        if p == 3:
            G = AF + 8
            for i in range(8):
                pk(k, 'mul', G + 2 * i, ACC + 2 * i, ACC + 2 * i)
            for i in range(8):
                pk(k, 'fma', G + 2 * i, G + 2 * i, ('b', cB), ('b', cA))
            for i in range(8):
                pk(k, 'mul', G + 2 * i, G + 2 * i, ACC + 2 * i)
            for i in range(16):
                e(f'v_exp_f32 v{G + i}, v{G + i}')
            for i in range(8):
                pk(k, 'fma', G + 2 * i, G + 2 * i, ('b', cI), ('b', cI))
            for i in range(16):
                e(f'v_rcp_f32 v{G + i}, v{G + i}')
            for i in range(8):
                pk(k, 'mul', ACC + 2 * i, ACC + 2 * i, G + 2 * i)
        for i in range(8):
            e(f'v_cvt_pk_bf16_f32 v{OUT + i}, v{acc + 2 * i}, v{acc + 2 * i + 1}')
        dst = {2: XB, 3: H, 4: X1}[p]
        e(f's_add_u32 s{sA}, s{sT16}, s{sJ2}')
        e(f's_add_u32 s{sA}, s{sA}, {hex(L + dst)}')
        self.stores([f'buffer_store_dwordx4 {vr(OUT, 4)}, v{vL16}, {S_WS}, s{sA} offen',
                     f'buffer_store_dwordx4 {vr(OUT + 4, 4)}, v{vL16}, {S_WS}, s{sA} offen offset:1024'])
        export = None
        if p != 3:
            stat_partial(k, acc, T)
            e(f's_add_u32 s{sA}, s{sT1}, {hex(L + (SB if p == 2 else S1))}')
            self.stores([f'buffer_store_dword v{T}, v{vStat}, {S_WS}, s{sA} offen'])
        else:
            e(f's_lshl_b32 s{sA}, s{sGRP}, 15')
            e(f's_add_u32 s{sA}, s{sA}, s{sJ2}')
            e(f's_cmp_eq_u32 s{sW}, 0')
            e(f's_cselect_b32 s{sB}, 0x4000, 0')
            e(f's_add_u32 s{sA}, s{sA}, s{sB}')
            e(f's_add_u32 s61, s{sA}, {hex(L + EXPH)}')
            export = (sEXP, [f'buffer_store_dwordx4 {vr(OUT, 4)}, v{vL16}, {S_WS}, s61 offen sc1',
                             f'buffer_store_dwordx4 {vr(OUT + 4, 4)}, v{vL16}, {S_WS}, s61 offen offset:1024 sc1'])
        self.flag(6 * l + p, export)
        if p == 4:
            for i in range(8):
                pk(k, 'add', vX + 2 * i, vX + 2 * i, vXN + 2 * i)
        else:
            e('s_barrier')
        self.stamp()

    def p5(self, l):
        k = self.k
        e = k.e
        L = lb(l)
        ACC = W0
        BF = W0 + 32
        CSR = W0 + 64
        G = W0 + 96
        U = W0 + 112
        OUT = W0 + 128
        ST = W0 + 136
        CN = W0 + 140
        vRd, vSt1, T = W0 + 152, W0 + 153, W0 + 154
        NB = 8
        self.prefetch(self.opt.get('p5_h', 6))
        e(f's_mul_i32 s{sA}, s{sJ}, 7')
        e(f's_lshl_b32 s{sB}, s{sW}, 1')
        e(f's_add_u32 s61, s{sA}, s{sB}')
        e(f's_lshl_b32 s{sA}, s61, 7')
        e(f's_add_u32 s{sA}, s{sA}, {hex(CS3)}')
        e(f'v_lshrrev_b32 v{T}, 5, v0')
        e(f'v_lshlrev_b32 v{T + 1}, 4, v{T}')
        for i in range(8):
            e(f'buffer_load_dwordx4 {vr(CSR + 4 * i, 4)}, v{T + 1}, {S_WS}, s{sA} offen offset:{32 * i}', 'cs')
        e(f'v_and_b32 v{T + 1}, 16, v0')
        e(f'v_lshlrev_b32 v{T + 1}, 10, v{T + 1}')
        e(f'v_lshl_add_u32 v{T + 1}, v{T}, 8, v{T + 1}')
        e(f'v_and_b32 v{T}, 15, v0')
        e(f'v_lshl_add_u32 v{vRd}, v{T}, 4, v{T + 1}')
        e(f'v_add_u32 v{vRd}, {LY}, v{vRd}')
        e(f's_cmp_eq_u32 s{sW}, 3')
        e(f's_cselect_b32 s{sA}, {hex(OOB)}, 0')
        e(f'v_add_u32 v{vSt1}, s{sA}, v{vH2st}')
        self.poll(vPown, 6 * l + 4)
        self.stamp()
        e(f's_add_u32 s{sB}, s{sT1}, {hex(L + S1)}')
        e(f'buffer_load_dwordx4 {vr(ST, 4)}, v{vL16}, {S_WS}, s{sB} offen sc1', 'stat')

        def lds_own(c):
            e(f's_lshl_b32 s{sB}, s{sW}, 14')
            e(f's_add_u32 m0, s{sB}, {LY + c * 4096}')
        self.tile_dma(vL16, sT16, L + X1, lds_own, 16, lambda c: ('a', c))
        self.prefetch(64, self.w4(l, 0, 0))
        k.vmwait('stat')
        stat_combine(k, ST, T, T + 1)
        e(f'v_add_f32 v{T + 1}, {fbits(1e-5)}, v{T + 1}')
        e(f'v_rsq_f32 v{T + 1}, v{T + 1}')
        e(f'v_sub_f32 v{T}, 0, v{T}')
        e(f'v_and_b32 v{T + 2}, 15, v0')
        e(f'v_lshlrev_b32 v{T + 2}, 2, v{T + 2}')
        e(f's_lshl_b32 s{sA}, s{sW}, 6')
        e(f's_add_u32 s{sA}, s{sA}, {LZ}')
        e(f'v_add_u32 v{T + 2}, s{sA}, v{T + 2}')
        e(f'ds_write2_b32 v{T + 2}, v{T + 1}, v{T} offset0:0 offset1:128', 'sw')
        e(f'v_and_b32 v{T + 2}, 31, v0')
        e(f'v_lshlrev_b32 v{T + 2}, 2, v{T + 2}')
        e(f'v_add_u32 v{T + 2}, {LZ}, v{T + 2}')
        jobs = [(0, 0), (0, 1), (1, 0), (1, 1)]
        steps = [(n, s) for n in range(4) for s in range(32)]

        def rd(idx):
            n, s = steps[idx]
            off = jobs[n][0] * 32768 + (s >> 1) * 1024 + (s & 1) * 512
            e(f'ds_read_b128 {vr(BF + (idx % NB) * 4, 4)}, v{vRd} offset:{off}', ('f', idx))
        self.rdnext = 0

        def mf(idx, lim=128):
            n, s = steps[idx]
            while self.rdnext < min(idx + NB - 1, lim):
                rd(self.rdnext)
                self.rdnext += 1
            wn = self.w3(l, jobs[n][1], s)
            if n < 2:
                self.need_w(wn)
            k.lgwait(('f', idx))
            a = vr(ACC + (n & 1) * 16, 16)
            e(f'v_mfma_f32_32x32x16_bf16 {a}, {ar(self.slot(wn))}, {vr(BF + (idx % NB) * 4, 4)}, {a if s else "0"}')
            if n >= 2:
                self.dead.add(wn)
                self.prefetch(1)

        def gelu_ops(n, packed):
            rh, ct = jobs[n]
            a = ACC + (n & 1) * 16
            cs = CSR + 16 * ct
            cn = CN + 6 * rh
            nmu, cA, cB, cI = cn + 1, cn + 2, cn + 3, cn + 4
            ops = []
            add = lambda c, f: ops.append((c, f))
            for c in range(2):
                R = range(8 * c, 8 * c + 8)
                if packed:
                    R2 = range(8 * c, 8 * c + 8, 2)
                    for i in R2: add(4, lambda i=i: pk(k, 'fma', U + i, cs + i, ('b', nmu), a + i))
                    for i in R2: add(4, lambda i=i: pk(k, 'mul', G + i, U + i, U + i))
                    for i in R2: add(4, lambda i=i: pk(k, 'fma', G + i, G + i, ('b', cB), ('b', cA)))
                    for i in R2: add(4, lambda i=i: pk(k, 'mul', G + i, G + i, U + i))
                    for i in R: add(8, lambda i=i: e(f'v_exp_f32 v{G + i}, v{G + i}'))
                    for i in R2: add(4, lambda i=i: pk(k, 'fma', G + i, G + i, ('b', cI), ('b', cI)))
                    for i in R: add(8, lambda i=i: e(f'v_rcp_f32 v{G + i}, v{G + i}'))
                    for i in R2: add(4, lambda i=i: pk(k, 'mul', U + i, U + i, G + i))
                else:
                    for i in R: add(4, lambda i=i: e(f'v_fma_f32 v{U + i}, v{cs + i}, v{nmu}, v{a + i}'))
                    for i in R: add(4, lambda i=i: e(f'v_mul_f32 v{G + i}, v{U + i}, v{U + i}'))
                    for i in R: add(4, lambda i=i: e(f'v_fma_f32 v{G + i}, v{G + i}, v{cB}, v{cA}'))
                    for i in R: add(4, lambda i=i: e(f'v_mul_f32 v{G + i}, v{G + i}, v{U + i}'))
                    for i in R: add(8, lambda i=i: e(f'v_exp_f32 v{G + i}, v{G + i}'))
                    for i in R: add(4, lambda i=i: e(f'v_fma_f32 v{G + i}, v{G + i}, v{cI}, v{cI}'))
                    for i in R: add(8, lambda i=i: e(f'v_rcp_f32 v{G + i}, v{G + i}'))
                    for i in R: add(4, lambda i=i: e(f'v_mul_f32 v{U + i}, v{U + i}, v{G + i}'))
                for i in range(4):
                    add(4, lambda i=i, c=c: e(f'v_cvt_pk_bf16_f32 v{OUT + 4 * c + i}, v{U + 8 * c + 2 * i}, v{U + 8 * c + 2 * i + 1}'))

                def st(c=c):
                    e(f's_lshl_b32 s{sA}, s{sGRP}, 2')
                    e(f's_add_u32 s{sA}, s{sA}, {2 * rh}')
                    e(f's_mul_i32 s{sA}, s{sA}, 56')
                    e(f's_add_u32 s{sA}, s{sA}, s61')
                    e(f's_lshl_b32 s{sA}, s{sA}, 10')
                    e(f's_add_u32 s{sA}, s{sA}, {hex(L + H2 + ct * 1024)}')
                    self.stores([f'buffer_store_dwordx4 {vr(OUT + 4 * c, 4)}, v{vSt1 if ct else vH2st}, {S_WS}, s{sA} offen offset:{512 * c}'])
                add(16, st)
            return ops

        for c in range(4):
            k.vmwait(('a', c))
            k.lgwait('sw')
            e('s_barrier')
            if c == 0:
                self.stamp()
                for rh in range(2):
                    e(f'ds_read2_b32 {vr(CN + 6 * rh, 2)}, v{T + 2} offset0:{32 * rh} offset1:{128 + 32 * rh}', 'cn')
            for s in range(8 * c, 8 * c + 8):
                mf(s, 8 * c + 8 if c < 3 else 128)
            if c == 0:
                for rh in range(2):
                    cn = CN + 6 * rh
                    e(f'v_rcp_f32 v{cn + 4}, v{cn}')
                    e(f'v_mul_f32 v{cn + 2}, {fbits(-GK)}, v{cn}')
                    e(f'v_mul_f32 v{cn}, v{cn}, v{cn}')
                    e(f'v_mul_f32 v{cn + 3}, {fbits(0.044715)}, v{cn}')
                    e(f'v_mul_f32 v{cn + 3}, v{cn + 3}, v{cn + 2}')
        k.vmwait('cs')
        for n in range(1, 4):
            interleave(k, [lambda i=i: mf(i) for i in range(32 * n, 32 * n + 32)], gelu_ops(n - 1, False),
                       self.opt.get('gelu_budget', 26), start=2)
        self.stamp()
        for c, f in gelu_ops(3, True):
            f()
        self.flag(6 * l + 5)
        self.stamp()

    def p6(self, l):
        k = self.k
        e = k.e
        L = lb(l)
        ACC = W0
        AF = W0 + 48
        WIN = 8
        RD = AF
        T = W0 + 180
        acc = lambda u: vX if u == 0 else ACC + (u - 1) * 16
        self.prefetch(self.opt.get('p6_h', 6), self.w4(l, 14, 0))
        for u in range(1, 4):
            e(f'v_add_u32 v{T + u}, s{sRT + 3 + u}, v{vL16}')
        e(f's_mul_i32 s{sA}, s{sW}, {12 * 1024}')
        e(f's_add_u32 s{sA}, s{sA}, {LX}')
        e(f'v_add_u32 v{T}, s{sA}, v{vL16}')
        self.poll(vP6, 6 * l + 5)
        self.stamp()

        def ld(ks):
            for u in range(4):
                if ks % 4 == 0:
                    e(f's_add_u32 s{90 + u}, s{sRT + u}, {hex(L + H2 + ks * 1024)}')
                e(f'buffer_load_dwordx4 {vr(AF + (ks % WIN) * 16 + u * 4, 4)}, v{vL16}, {S_WS}, s{90 + u} offen offset:{(ks & 3) * 1024} sc1', ('a', ks, u))
        for ks in range(WIN):
            if ks >= 2:
                self.prefetch(64, self.w4(l, ks - 1, 0))
            ld(ks)
        for ks in range(14):
            self.need_w(self.w4(l, ks, 3))
            for u in (1, 2, 3, 0):
                k.vmwait(('a', ks, u))
                for ct in range(4):
                    a = vr(acc(u) + 4 * ct, 4)
                    cin = a if (ks or u == 0) else '0'
                    e(f'v_mfma_f32_16x16x32_bf16 {a}, {ar(self.slot(self.w4(l, ks, ct)))}, {vr(AF + (ks % WIN) * 16 + u * 4, 4)}, {cin}')
            for ct in range(4):
                self.dead.add(self.w4(l, ks, ct))
            if ks + WIN < 14:
                self.prefetch(64, min(self.w4(l, ks + WIN + 1, 0), self.w4(l, 14, 0)))
                ld(ks + WIN)
            elif l == 0:
                self.prefetch(self.opt.get('p6_t', 2))
        self.stamp()
        for u in range(1, 4):
            for ct in range(4):
                e(f'ds_write_b128 v{T + u}, {vr(acc(u) + 4 * ct, 4)} offset:{ct * 1024}', 'rw')
        k.lg0()
        e('s_barrier')
        for i in range(12):
            e(f'ds_read_b128 {vr(RD + 4 * i, 4)}, v{T} offset:{i * 1024}', ('rr', i))
        for i in range(12):
            k.lgwait(('rr', i))
            for h in range(2):
                pk(k, 'add', vX + (i & 3) * 4 + 2 * h, vX + (i & 3) * 4 + 2 * h, RD + 4 * i + 2 * h)
        OUT = ACC
        for i in range(8):
            e(f'v_cvt_pk_bf16_f32 v{OUT + i}, v{vX + 2 * i}, v{vX + 2 * i + 1}')
        if l == 0:
            Ln = lb(1)
            e(f's_add_u32 s{sA}, s{sT16}, s{sJ2}')
            e(f's_add_u32 s{sA}, s{sA}, {hex(Ln + XA)}')
            self.stores([f'buffer_store_dwordx4 {vr(OUT, 4)}, v{vL16}, {S_WS}, s{sA} offen',
                         f'buffer_store_dwordx4 {vr(OUT + 4, 4)}, v{vL16}, {S_WS}, s{sA} offen offset:1024'])
            stat_partial(k, vX, T + 4)
            e(f's_add_u32 s{sA}, s{sT1}, {hex(Ln + SA)}')
            self.stores([f'buffer_store_dword v{T + 4}, v{vStat}, {S_WS}, s{sA} offen'])
            e(f's_lshl_b32 s{sA}, s{sGRP}, 15')
            e(f's_add_u32 s{sB}, s{sA}, {hex(Ln + EXPX + 0x4000)}')
            e(f's_add_u32 s{sA}, s{sA}, s{sJ2}')
            e(f's_add_u32 s61, s{sA}, {hex(Ln + EXPX)}')
            self.flag(6, (sEXN, [f'buffer_store_dwordx4 {vr(OUT, 4)}, v{vL16}, {S_WS}, s61 offen sc1',
                                 f'buffer_store_dwordx4 {vr(OUT + 4, 4)}, v{vL16}, {S_WS}, s61 offen offset:1024 sc1',
                                 f'buffer_store_dword v{T + 4}, v{vStat}, {S_WS}, s{sB} offen sc1']))
            self.prefetch(self.opt.get('p1_h', 6))
        else:
            for pr in range(2):
                for h in range(2):
                    e(f'v_permlane16_swap_b32 v{OUT + 4 * pr + h}, v{OUT + 4 * pr + 2 + h}')
            a, t0, t1 = T + 4, T + 5, T + 6
            tile_rowmajor_addr(k, a, t0, t1, 0)
            e(f'v_subrev_u32 v{a}, v{t1}, v{a}')
            e(f'v_and_b32 v{t0}, 1, v{t1}')
            e(f'v_lshl_add_u32 v{a}, v{t0}, 5, v{a}')
            e(f'v_lshrrev_b32 v{t0}, 1, v{t1}')
            e(f'v_lshl_add_u32 v{a}, v{t0}, 4, v{a}')
            e(f'buffer_store_dwordx4 {vr(OUT, 4)}, v{a}, {S_OUT}, 0 offen')
            e(f'buffer_store_dwordx4 {vr(OUT + 4, 4)}, v{a}, {S_OUT}, 0 offen offset:64')
        self.stamp()

    def build(self):
        k = self.k
        self.init()
        stop = self.opt.get('stop', 99)
        for l in range(2):
            for p, f in enumerate((lambda: self.p1(l), lambda: self.small(l, 2), lambda: self.small(l, 3),
                                   lambda: self.small(l, 4), lambda: self.p5(l), lambda: self.p6(l)), 1):
                if 6 * l + p <= stop:
                    f()
        if self.opt.get('prof'):
            k.e('s_lshl_b32 s40, s2, 2')
            k.e(f's_add_u32 s40, s40, s{sW}')
            k.e('s_lshl_b32 s40, s40, 8')
            k.e(f's_add_u32 s40, s40, {hex(PROF)}')
            k.e(f'v_lshlrev_b32 v{vF}, 2, v0')
            k.e(f'buffer_store_dword v{vProf}, v{vF}, {S_WS}, s40 offen')
        k.label('BAIL')
        k.e('s_endpgm')
        return k.finish()


HEADER = open('cdna_kernels/' + NAME + '.s.ref').read().split('; Override launch')[0]


def generate(opt):
    m = Main(opt)
    body1 = m.build()
    body0 = gen_k0()
    s = HEADER
    s += '; @launch kernel=prepack_kernel grid=(256,1,1) block=(256,1,1) lds=36864\n'
    s += f'; @launch kernel={NAME}_kernel grid=(256,1,1) block=(256,1,1) lds=163840\n'
    s += '.amdgcn_target "amdgcn-amd-amdhsa--gfx950"\n.text\n'
    for name, body in (('prepack_kernel', body0), (NAME + '_kernel', body1)):
        s += f'.globl {name}\n.p2align 8\n.type {name},@function\n{name}:\n{body}\n'
    s += KD.format(name='prepack_kernel', vgpr=128, acc=128)
    s += KD.format(name=NAME + '_kernel', vgpr=512, acc=256)
    return s, m


if __name__ == '__main__':
    opt = {}
    out = 'cdna_kernels/' + NAME + '.s'
    for a in sys.argv[1:]:
        if a.startswith('out='):
            out = a[4:]
        else:
            kx, v = a.split('=')
            opt[kx] = int(v)
    s, m = generate(opt)
    open(out, 'w').write(s)
    print('wrote', out, len(s), 'bytes;', len(m.k.ins), 'instructions;', m.k.nnop, 'nops; stamps', m.nstamp)
```
